```python
import torch

def _softmax(x, axis=-1):
    return torch.softmax(x, dim=axis)
def _gelu(x):
    return torch.nn.functional.gelu(x, approximate="tanh")
def _silu(x):
    return torch.nn.functional.silu(x)
def _sigmoid(x):
    return torch.sigmoid(x)
def _layernorm(x, axis=-1, eps=1e-5):
    m = x.mean(dim=axis, keepdim=True)
    v = x.var(dim=axis, keepdim=True, unbiased=False)
    return (x - m) / torch.sqrt(v + eps)
def _scatter_add(tgt, idx, src, axis=0):
    return tgt.clone().index_add_(axis, idx, src)
def _segment_sum(src, seg, n):
    out = torch.zeros((n,) + src.shape[1:], dtype=src.dtype)
    return out.index_add_(0, seg, src)
def _pad(x, pw):
    flat = tuple(v for pair in reversed(pw) for v in pair)
    return torch.nn.functional.pad(x, flat)

kernel_name = 'standalone__adm_resblock__diffusion'

def setup_inputs():

    _w = (lambda a: (lambda t: t.to(torch.bfloat16) if t.is_floating_point() else t)(torch.as_tensor(a)))
    B, C, HW, E = 2, 512, 64, 384
    sc = (9.0 * C) ** -0.5
    return {
        "x": _w((lambda *s: torch.randn(*s, dtype=torch.bfloat16) * 0.05)(B, C, HW, HW)),
        "t_emb": _w((lambda *s: torch.randn(*s, dtype=torch.bfloat16) * 0.2)(B, E)),
        "g1": _w(1.0 + 0.1 * (lambda *s: torch.randn(*s, dtype=torch.bfloat16) * 0.2)(C)),
        "be1": _w(0.1 * (lambda *s: torch.randn(*s, dtype=torch.bfloat16) * 0.2)(C)),
        "w1": _w((lambda *s: torch.randn(*s, dtype=torch.bfloat16) * 0.2)(C, C, 3, 3) * sc),
        "w_emb": _w((lambda *s: torch.randn(*s, dtype=torch.bfloat16) * 0.2)(E, C) * (E ** -0.5)),
        "g2": _w(1.0 + 0.1 * (lambda *s: torch.randn(*s, dtype=torch.bfloat16) * 0.2)(C)),
        "be2": _w(0.1 * (lambda *s: torch.randn(*s, dtype=torch.bfloat16) * 0.2)(C)),
        "w2": _w((lambda *s: torch.randn(*s, dtype=torch.bfloat16) * 0.2)(C, C, 3, 3) * sc),
    }

def reference(x, t_emb, g1, be1, w1, w_emb, g2, be2, w2):
    B, C, H, W = x.shape
    G, eps = 4, 1e-5
    def gn(z, gamma, beta):
        zr = z.reshape(B, G, (C // G) * H * W)
        mu = zr.mean(-1).reshape(B, G, 1)
        var = ((zr - mu) ** 2).mean(-1).reshape(B, G, 1)
        zn = ((zr - mu) / torch.sqrt(var + eps)).reshape(B, C, H, W)
        return zn * gamma.reshape(1, C, 1, 1) + beta.reshape(1, C, 1, 1)
    def conv3(z, w):
        zp = _pad(z, ((0, 0), (0, 0), (1, 1), (1, 1)))
        taps = [torch.einsum("bchw,oc->bohw", zp[:, :, i:i+H, j:j+W], w[:, :, i, j]) for i in range(3) for j in range(3)]
        out = taps[0]
        for t in taps[1:]:
            out = out + t
        return out
    h = conv3(_silu(gn(x, g1, be1)), w1)
    emb = _silu(t_emb) @ w_emb
    h = h + emb.reshape(B, C, 1, 1)
    h = conv3(_silu(gn(h, g2, be2)), w2)
    return x + h
```

```python
import re

REG_RE = re.compile(r'^(-|abs\(|\|)*([vas])(\d+|\[(\d+):(\d+)\])\)?\|?$')

def regs_of(op):
    op = op.strip()
    if op in ('vcc',): return {'s106', 's107'}
    if op == 'exec': return {'exec'}
    if op == 'm0': return {'m0'}
    m = REG_RE.match(op)
    if not m: return set()
    t = m.group(2)
    if m.group(4) is not None:
        return {f"{t}{i}" for i in range(int(m.group(4)), int(m.group(5)) + 1)}
    return {f"{t}{int(m.group(3))}"}

TRANS = ('v_exp_f32', 'v_log_f32', 'v_rcp_f32', 'v_rsq_f32', 'v_sqrt_f32', 'v_sin_f32', 'v_cos_f32')

class P:
    def __init__(self, text):
        self.text = text
        t = text.split(';')[0].strip()
        self.is_label = t.endswith(':') or t.startswith('.') or not t
        self.op = ''; self.rd = set(); self.wr = set(); self.kind = 'none'; self.data = set()
        if self.is_label: return
        parts = t.split(None, 1)
        self.op = op = parts[0]
        rest = parts[1] if len(parts) > 1 else ''
        ops = [x.strip() for x in rest.split(',')]
        clean = []
        for o in ops:
            clean.append(o.split()[0] if o else o)
        ops = clean
        R = [regs_of(o) for o in ops]
        allr = set().union(*R) if R else set()
        self.dpp = 'row_' in rest or 'wave_' in rest or 'quad_perm' in rest
        if op.startswith('v_mfma'):
            self.kind = 'mfma'; self.wr = R[0]; self.rd = R[1] | R[2] | R[3]; self.srcc = R[3]
            self.passes = 8 if '32x32' in op else 4
        elif op.startswith('v_'):
            self.kind = 'valu'
            if op.startswith('v_cmp'):
                self.wr = R[0]; self.rd = set().union(*R[1:])
            elif op.startswith(('v_add_co', 'v_sub_co', 'v_addc_co', 'v_subb_co')):
                self.wr = R[0] | R[1]; self.rd = set().union(*R[2:])
            elif op.startswith('v_permlane'):
                self.wr = R[0] | R[1]; self.rd = R[0] | R[1]
            else:
                self.wr = R[0]; self.rd = set().union(*R[1:]) if len(R) > 1 else set()
                if op.startswith(('v_fmac', 'v_dot2c', 'v_fma_mixhi', 'v_fma_mixlo', 'v_writelane')) or self.dpp:
                    self.rd |= R[0]
        elif op.startswith('ds_'):
            self.kind = 'ds'
            if op.startswith(('ds_read', 'ds_bpermute', 'ds_permute', 'ds_swizzle')):
                self.wr = R[0]; self.rd = set().union(*R[1:])
            else:
                self.rd = allr
        elif op.startswith(('buffer_', 'global_')):
            self.kind = 'vmem'
            if ' lds' in rest:
                self.rd = allr | {'m0'}
            elif 'load' in op:
                self.wr = R[0]; self.rd = set().union(*R[1:])
            else:
                self.rd = allr
                if op.startswith('buffer_store') and op.endswith(('x3', 'x4')): self.data = R[0]
                if op.startswith('global_store') and op.endswith(('x3', 'x4')): self.data = R[1]
                if 'atomic' in op and ' sc0' in rest: self.wr = R[0]
        elif op.startswith('s_'):
            self.kind = 'salu'
            if op.startswith(('s_cmp', 's_waitcnt', 's_barrier', 's_nop', 's_cbranch', 's_branch', 's_endpgm', 's_sleep', 's_setprio', 's_bitcmp')):
                self.rd = allr
            else:
                self.wr = R[0]; self.rd = set().union(*R[1:]) if len(R) > 1 else set()
                if 'saveexec' in op: self.wr = self.wr | {'exec'}
    def states(self):
        if self.is_label: return 0
        if self.op == 's_nop': return int(self.text.split()[1]) + 1
        return 1

def need(prod, cons):
    n = 0
    isv = lambda s: {r for r in s if r[0] in 'va' and r != 'vcc'}
    iss = lambda s: {r for r in s if r[0] == 's'}
    if prod.kind == 'valu':
        w = isv(prod.wr)
        if cons.kind == 'valu' and cons.dpp and w & cons.rd: n = max(n, 2)
        if cons.op.startswith(('v_readlane', 'v_readfirstlane')) and w & cons.rd: n = max(n, 1)
        if cons.op.startswith('v_permlane') and w & cons.rd: n = max(n, 2)
        if cons.kind == 'mfma' and w & cons.rd: n = max(n, 2)
        if prod.op.startswith(TRANS) and cons.kind == 'valu' and w & cons.rd: n = max(n, 1)
        if ('sdwa' in prod.op or 'mix' in prod.op) and cons.kind == 'valu' and w & (cons.rd | cons.wr): n = max(n, 1)
        ws = iss(prod.wr)
        if ws:
            if cons.kind == 'valu' and ws & cons.rd: n = max(n, 4 if cons.op.startswith(('v_readlane', 'v_writelane')) else 2)
            if cons.kind == 'vmem' and ws & cons.rd: n = max(n, 5)
            if cons.kind == 'salu' and ws & cons.rd: n = max(n, 1)
    if prod.kind == 'mfma':
        if cons.kind in ('valu', 'ds', 'vmem') and prod.wr & (cons.rd | cons.wr): n = max(n, 12 if prod.passes == 8 else 8)
        if cons.kind == 'mfma':
            if prod.wr & (cons.rd - cons.srcc): n = max(n, 12 if prod.passes == 8 else 8)
            if prod.wr & cons.srcc and (prod.wr != cons.srcc or prod.passes != cons.passes): n = max(n, 10 if prod.passes == 8 else 6)
        if cons.kind == 'valu' and prod.srcc & cons.wr: n = max(n, 7 if prod.passes == 8 else 3)
    if prod.kind == 'vmem' and prod.data and prod.data & cons.wr: n = max(n, 2)
    if prod.kind == 'salu' and 'm0' in prod.wr and cons.kind == 'vmem' and 'm0' in cons.rd: n = max(n, 1)
    if prod.kind == 'salu' and 'exec' in prod.wr and cons.kind == 'valu' and cons.dpp: n = max(n, 1)
    return n

def pad(lines, fix=True):
    out = []; hist = []; nfix = 0
    for t in lines:
        p = P(t)
        if not p.is_label:
            d = 0; req = 0
            for q in reversed(hist):
                if d >= 20: break
                req = max(req, need(q, p) - d)
                d += q.states()
            if req > 0:
                if not fix: raise Exception(f"hazard before: {t} (need {req})")
                nop = f"s_nop {req - 1}"
                out.append(nop); hist.append(P(nop)); nfix += 1
            hist.append(p)
        out.append(t)
    return out

def fmt(lines):
    return "".join((f"{x}\n" if (x.endswith(':') or x.startswith('.')) else f"    {x}\n") for x in lines)
```

```python
from asmlib import P, need

V_U = 1; V_A = [2, 3, 4]; VA = [5, 6]; VB = [7, 8]; V_L16 = 9
VSET = 16; RBUF = 80; U3 = 112; URING = 128
S_USRD = 4; S_ASRD = 8
S_UOFF = 40; S_AOFF = 41; S_SGN = 42; S_M0B = 43; S_CNT = 44
STAGE = 24576
def G(mb, j): return VSET + 16 * mb + 4 * j
def Rr(buf, g): return RBUF + 16 * buf + 4 * g
def Ur(n, nbl, j):
    if j == 3: return U3 + (n % 2) * 8 + nbl * 4
    return URING + (n % 4) * 24 + nbl * 12 + j * 4
def ACC(h, tr, nbl, j, tp): return ((((h * 2 + tr) * 2 + nbl) * 4 + j) * 2 + tp) * 4

class I:
    def __init__(s, text, kind, rd=(), wr=(), tok=None, req=None):
        s.text = text; s.kind = kind; s.rd = list(rd); s.wr = list(wr); s.tok = tok; s.req = req or []
def lab(r, n, l): return [(r + i, l) for i in range(n)]

def uload(n, nbl, jj, extra=''):
    r = Ur(n, nbl, jj)
    return I(f"buffer_load_dwordx4 v[{r}:{r+3}], v{V_U}, s[{S_USRD}:{S_USRD+3}], s{S_UOFF} offen offset:{jj*1024}{extra}", 'vm',
             wr=lab(r, 4, ('U', n, nbl, jj)), req=[('uoff', 2 * n + nbl)])
def uadv(hs): return I(f"s_add_u32 s{S_UOFF}, s{S_UOFF}, 12288", 's', tok=('uoff', hs))
def aadv(k): return I(f"s_add_u32 s{S_AOFF}, s{S_AOFF}, 0x40000", 's', tok=('aoff', k))
def setm0(k, hi): return I(f"s_add_u32 m0, s{S_M0B}, {(k % 2) * STAGE + hi * 4096}", 's', tok=('m0', (k, hi)))
def adma(k, t, extra=''):
    return I(f"buffer_load_dwordx4 v{V_A[t//2]}, s[{S_ASRD}:{S_ASRD+3}], s{S_AOFF} offen offset:{(t%4)*1024}{extra} lds", 'vm',
             wr=[(('lds', k % 2, t), ('A', k))], req=[('aoff', k), ('m0', (k, t // 4)), ('free', k)])
def dsr(k, mb, g):
    buf = mb % 2; r = Rr(buf, g); tr, tp = mb // 2, mb % 2
    a = (VA if g < 2 else VB)[tr]
    return I(f"ds_read_b128 v[{r}:{r+3}], v{a} offset:{(k % 2) * STAGE + (2 * tp + g % 2) * 1024}", 'lg',
             wr=lab(r, 4, ('R', k, mb, g)), req=[('full', k)], tok=('rd', k))
def xform(k, mb):
    o = []; buf = mb % 2
    for par, j in ((0, 0), (1, 3)):
        for q in range(4):
            d = G(mb, j) + q; a = Rr(buf, par) + q; b = Rr(buf, 2 + par) + q
            o.append(I(f"v_pk_fma_f16 v{d}, v{b}, s{S_SGN}, v{a}", 'v', rd=[(a, ('R', k, mb, par)), (b, ('R', k, mb, 2 + par))], wr=[(d, ('V', k, mb, j))]))
    for j, neg in ((1, ''), (2, ' neg_lo:[0,1] neg_hi:[0,1]')):
        for q in range(4):
            d = G(mb, j) + q; a = G(mb, 0) + q; b = G(mb, 3) + q
            o.append(I(f"v_pk_add_f16 v{d}, v{a}, v{b}{neg}", 'v', rd=[(a, ('V', k, mb, 0)), (b, ('V', k, mb, 3))], wr=[(d, ('V', k, mb, j))]))
    return o
def derive(n):
    o = []
    for nbl in range(2):
        for j, src in ((3, 1), (2, 0)):
            for q in range(4):
                d = Ur(n, nbl, j) + q; a = Ur(n, nbl, src) + q; b = Ur(n, nbl, 2) + q
                o.append(I(f"v_pk_add_f16 v{d}, v{a}, v{b}", 'v', rd=[(a, ('U', n, nbl, src)), (b, ('U', n, nbl, 2))], wr=[(d, ('UD', n, nbl, j))]))
    return o
def mfma(k, h, mb, j, nbl):
    n = 2 * k + h
    a = ACC(h, mb // 2, nbl, j, mb % 2); u = Ur(n, nbl, j); v = G(mb, j)
    return I(f"v_mfma_f32_16x16x32_f16 a[{a}:{a+3}], v[{u}:{u+3}], v[{v}:{v+3}], a[{a}:{a+3}]", 'm',
             rd=lab(u, 4, ('U' if j < 2 else 'UD', n, nbl, j)) + lab(v, 4, ('V', k, mb, j)))
def wait(key, vm=False, lg=False):
    i = I("WAIT", 'w'); i.key = key; i.vm = vm; i.lg = lg; return i
def barrier(k):
    return I("s_barrier", 'b', rd=[(('lds', k % 2, t), ('A', k)) for t in range(6)], tok=('bar', k))

CFG = dict(
    ds=[10, 13, 16, 19, 22, 25, 28, 31],
    vm=[1, 4, 8, 11, 15, 18, 21, 26, 29],
    vstart=3, extra_gap=30, uflag='', aflag='',
)

def valu_slots(cfg):
    mem = set(cfg['ds']) | set(cfg['vm'])
    cap = [1 if g in mem else 2 for g in range(32)]
    cap[cfg['extra_gap']] += 48 - sum(cap)
    return cap

def substep(k, h, cfg, last_in_body=False):
    n = 2 * k + h
    cap = valu_slots(cfg); vs = cfg['vstart']
    spill = sum(cap[:vs])
    if h == 0: mine = xform(k, 2) + xform(k, 3)
    else: mine = xform(k + 1, 0) + xform(k + 1, 1)
    va = derive(n)[16 - spill:] + mine + derive(n + 1)[:16 - spill]
    memi = {}
    DSO = (0, 2, 1, 3)
    for i, g in enumerate(cfg['ds']): memi[g] = dsr(k + 1, 2 * h + i // 4, DSO[i % 4])
    uf, af = cfg['uflag'], cfg['aflag']
    if h == 0: vml = [uload(2*k+3, 0, j, uf) for j in range(3)] + [adma(k + 2, t, af) for t in range(6)]
    else: vml = [uload(2*k+3, 1, j, uf) for j in range(3)] + [uload(2*k+4, 0, j, uf) for j in range(3)] + [uload(2*k+4, 1, j, uf) for j in range(3)]
    for g, x in zip(cfg['vm'], vml): memi[g] = x
    free = [g for g in range(32) if g not in memi]
    sc = {g: [] for g in range(32)}
    def put(g, x, after=False):
        c = [f for f in free if (f >= g if after else f <= g) and not sc[f]]
        f = (min(c) if after else max(c)); sc[f].append(x); return f
    def gap_of(i):
        s = 0
        for g in range(32):
            s += cap[g]
            if i < s: return g
    vm = cfg['vm']
    put(gap_of(spill), wait(('a', k % 2, h), lg=True))
    if h == 0:
        b = put(cfg['ds'][0] - 1, barrier(k + 1))
        put(b - 1, wait(('bar', k % 2), vm=True, lg=True))
        put(vm[3] - 1, setm0(k + 2, 0))
        put(vm[6] + 1, setm0(k + 2, 1), after=True)
    else:
        put(gap_of(spill + 16), wait(('b', k % 2, h), lg=True))
    put(gap_of(spill + 32), wait(('d0', k % 2, h), vm=True))
    put(gap_of(spill + 40), wait(('d1', k % 2, h), vm=True))
    if h == 0:
        put(0, uadv(2 * (2*k+3)), after=True)
        put(vm[2] + 1, uadv(2 * (2*k+3) + 1), after=True)
    else:
        put(0, aadv(k + 3), after=True)
        put(vm[2] + 1, uadv(2 * (2*k+4)), after=True)
        put(vm[5] + 1, uadv(2 * (2*k+4) + 1), after=True)
        if last_in_body:
            put(vm[6] + 1, I(f"s_sub_u32 s{S_CNT}, s{S_CNT}, 1", 's'), after=True)
    L = []; vi = 0
    for g in range(32):
        mb = g // 8; jo = (0, 1, 3, 2) if mb == 0 else (0, 3, 1, 2)
        L.append(mfma(k, h, mb, jo[(g % 8) // 2], g % 2))
        if g in memi: L.append(memi[g])
        L += sc[g]
        L += va[vi:vi + cap[g]]; vi += cap[g]
    return L

def prologue(cfg, mid=()):
    cap = valu_slots(cfg); spill = sum(cap[:cfg['vstart']])
    uf, af = cfg['uflag'], cfg['aflag']
    DSO = (0, 2, 1, 3)
    def A(k): return [setm0(k, 0), I("s_nop 0", 's')] + [adma(k, t, af) for t in range(4)] + [setm0(k, 1), I("s_nop 0", 's')] + [adma(k, t, af) for t in (4, 5)] + [aadv(k + 1)]
    def U(n, nbl, adv=True): return [uload(n, nbl, j, uf) for j in range(3)] + ([uadv(2 * n + nbl + 1)] if adv else [])
    L = A(0) + U(0, 0) + U(0, 1) + U(1, 0)
    L += [I(x, 's') for x in mid]
    a1 = A(1)
    L += a1[:5]
    L += [wait('p0', vm=True), barrier(0)]
    L += [dsr(0, 0, g) for g in DSO] + [dsr(0, 1, g) for g in DSO]
    L += a1[5:]
    L += [wait('p1', lg=True)] + xform(0, 0) + [dsr(0, 2, g) for g in DSO]
    L += U(1, 1)
    L += [wait('p2', lg=True)] + xform(0, 1) + [dsr(0, 3, g) for g in DSO]
    L += U(2, 0)
    L += [wait('p3', vm=True)] + derive(0)[:16 - spill]
    L += U(2, 1, adv=False)
    return L

def resolve(seq):
    state = {}; prod = {}
    cur = {'uoff': 0, 'aoff': 0, 'm0': None}
    bars = set(); cnt = {'vm': 0, 'lg': 0}
    lastwait = {'vm': None, 'lg': None}
    res = {}; rd_idx = {}
    def require(c, idx, who):
        w = lastwait[c]
        assert w is not None and idx < w[1], f"no wait covers {c} op {idx} for {who.text}"
        key = w[0]; nmax = w[1] - 1 - idx
        r = res.setdefault(key, {}); r[c] = min(r.get(c, 63 if c == 'vm' else 15), nmax)
    for ins in seq:
        if ins.kind == 'w':
            res.setdefault(ins.key, {})
            if ins.vm: lastwait['vm'] = (ins.key, cnt['vm'])
            if ins.lg: lastwait['lg'] = (ins.key, cnt['lg'])
            continue
        for r, l in ins.rd:
            assert state.get(r) == l, f"{ins.text}: reg {r} holds {state.get(r)}, want {l}"
            if r in prod: require(*prod[r], ins)
        for t, v in ins.req:
            if t == 'full': assert v in bars, f"{ins.text}: stage {v} not published"
            elif t == 'free': assert v < 2 or (v - 1) in bars, f"{ins.text}: slot not free"
            else: assert cur[t] == v, f"{ins.text}: {t} is {cur[t]}, want {v}"
        if ins.kind == 'b':
            k = ins.tok[1]; bars.add(k)
            if k >= 1:
                assert len(rd_idx[k - 1]) == 16
                require('lg', max(rd_idx[k - 1]), ins)
        elif ins.tok and ins.tok[0] == 'rd': rd_idx.setdefault(ins.tok[1], []).append(cnt['lg'])
        elif ins.tok: cur[ins.tok[0]] = ins.tok[1]
        for r, l in ins.wr:
            state[r] = l
            if ins.kind in ('vm', 'lg'): prod[r] = (ins.kind, cnt[ins.kind])
            else: prod.pop(r, None)
        if ins.kind in ('vm', 'lg'): cnt[ins.kind] += 1
    return res

def build(cfg=CFG, mid=()):
    pro = prologue(cfg, mid)
    steps = [substep(k, 0, cfg) + substep(k, 1, cfg, last_in_body=(k % 2 == 1)) for k in range(8)]
    for k in range(2, 8): assert [x.text for x in steps[k]] == [x.text for x in steps[k - 2]]
    res = resolve(pro + sum(steps, []))
    def txt(L):
        o = []
        for x in L:
            if x.kind == 'w':
                r = res[x.key]; s = []
                if 'vm' in r: s.append(f"vmcnt({r['vm']})")
                if 'lg' in r: s.append(f"lgkmcnt({r['lg']})")
                o.append("s_waitcnt " + " ".join(s) if s else "s_nop 0")
            else: o.append(x.text)
        return o
    body = txt(steps[0] + steps[1])
    from asmlib import pad
    pad(body + body, fix=False)
    i = max(i for i, t in enumerate(body) if t.startswith(f"s_sub_u32 s{S_CNT}"))
    assert not any(t.startswith('s_add') for t in body[i + 1:])
    return txt(pro), body

if __name__ == '__main__':
    p, b = build()
    print("\n".join(p)); print("LOOP:"); print("\n".join(b)); print(len(p), len(b))
```

```python
import sys
from asmlib import pad, fmt
import mainloop as ml
from mainloop import *

OPT = dict(stamp=0)
for a in sys.argv[1:]:
    k, v = a.split('=')
    OPT[k] = int(v) if v.lstrip('-').isdigit() else v

WS_ESC = 0
WS_EMB = 4096
WS_SA = 8192
WS_SLOT1 = 0x3000
WS_SLOT2 = 0x4000
WS_STAMP = 0x10000
WS_A1 = 0x100000; WS_A2 = 0xA00000; WS_U1 = 0x1300000; WS_U2 = 0x1A00000
NEL = 128 * 64 * 64
SPIN = 0x100000
LOG2E = 0x3fb8aa3b; NLOG2E = 0xbfb8aa3b
def f2u(x):
    import struct; return struct.unpack('<I', struct.pack('<f', x))[0]

def srd(d, base, size, add=0, sadd=None):
    L = []
    if add or sadd is not None:
        if sadd is not None and add:
            L += [f"s_add_u32 s{d}, s{sadd}, {hex(add)}", f"s_add_u32 s{d}, s{base}, s{d}"]
        elif sadd is not None: L += [f"s_add_u32 s{d}, s{base}, s{sadd}"]
        else: L += [f"s_add_u32 s{d}, s{base}, {hex(add)}"]
        L += [f"s_addc_u32 s{d+1}, s{base+1}, 0"]
    elif d != base:
        L += [f"s_mov_b32 s{d}, s{base}", f"s_mov_b32 s{d+1}, s{base+1}"]
    L += [f"s_mov_b32 s{d+2}, {hex(size)}", f"s_mov_b32 s{d+3}, 0x20000"]
    return L

DPP = "row_mask:0xf bank_mask:0xf bound_ctrl:1"
def wave_reduce(op, regs):
    L = []
    for sh in (1, 2, 4, 8):
        for r in regs: L.append(f"{op}_dpp v{r}, v{r}, v{r} row_shr:{sh} {DPP}")
    for bc, m in ((15, '0xa'), (31, '0xc')):
        for r in regs: L.append(f"{op}_dpp v{r}, v{r}, v{r} row_bcast:{bc} row_mask:{m} bank_mask:0xf")
    return L
def unpack(dlo, dhi, s): return [f"v_lshlrev_b32 v{dlo}, 16, v{s}", f"v_and_b32 v{dhi}, 0xffff0000, v{s}"]
def pr(r): return f"v[{r}:{r+1}]"

def act_scale(g, b, t, sdst):
    L = []
    for r in (g, b):
        for i in range(4): L.append(f"v_and_b32 v{r+i}, 0x7fff7fff, v{r+i}")
        L += [f"v_pk_max_u16 v{r}, v{r}, v{r+1}", f"v_pk_max_u16 v{r+2}, v{r+2}, v{r+3}", f"v_pk_max_u16 v{r}, v{r}, v{r+2}"]
        L += unpack(r + 1, r + 2, r) + [f"v_max_u32 v{r}, v{r+1}, v{r+2}"]
    L += [f"v_mov_b32 v{t}, {hex(f2u(725.0))}", f"v_fma_f32 v{t}, v{g}, v{t}, v{b}"]
    L += wave_reduce("v_max_u32", [t])
    L += [f"v_frexp_exp_i32_f32 v{t}, v{t}", f"v_readlane_b32 s{sdst}, v{t}, 63",
          f"s_max_i32 s{sdst}, s{sdst}, -100", f"s_min_i32 s{sdst}, s{sdst}, 120"]
    return L
def exp2bits(d, e, bias, neg=False):
    if neg: return [f"s_sub_i32 s{d}, {bias + 127}, s{e}", f"s_lshl_b32 s{d}, s{d}, 23"]
    return [f"s_add_i32 s{d}, s{e}, {bias + 127}", f"s_lshl_b32 s{d}, s{d}, 23"]

def stats_accum(pairs, s1, s2):
    L = []
    for i, p in enumerate(pairs):
        a = s1 + 2 * (i % 2); q = s2 + 2 * (i % 2)
        L += [f"v_pk_add_f32 {pr(a)}, {pr(a)}, {pr(p)}", f"v_pk_fma_f32 {pr(q)}, {pr(p)}, {pr(p)}, {pr(q)}"]
    return L
def stats_finish(s1, s2, s_wave, ldsoff, t):
    L = [f"v_pk_add_f32 {pr(s1)}, {pr(s1)}, {pr(s1+2)}", f"v_pk_add_f32 {pr(s2)}, {pr(s2)}, {pr(s2+2)}",
         f"v_add_f32 v{s1}, v{s1}, v{s1+1}", f"v_add_f32 v{s1+1}, v{s2}, v{s2+1}"]
    L += wave_reduce("v_add_f32", [s1, s1 + 1])
    L += [f"s_lshl_b32 s60, s{s_wave}, 3", f"s_add_u32 s60, s60, {ldsoff}", f"v_mov_b32 v{t}, s60",
          "s_mov_b64 exec, 0x8000000000000000" if False else "s_lshl_b64 exec, 1, 63",
          f"ds_write_b64 v{t}, {pr(s1)}", "s_mov_b64 exec, -1", f"v_mov_b32 v{t}, {ldsoff}",
          "s_waitcnt lgkmcnt(0)", "s_barrier",
          f"ds_read_b128 v[{t+4}:{t+7}], v{t}", f"ds_read_b128 v[{t+8}:{t+11}], v{t} offset:16", "s_waitcnt lgkmcnt(0)",
          f"v_pk_add_f32 {pr(t+4)}, {pr(t+4)}, {pr(t+6)}", f"v_pk_add_f32 {pr(t+8)}, {pr(t+8)}, {pr(t+10)}",
          f"v_pk_add_f32 {pr(s1)}, {pr(t+4)}, {pr(t+8)}"]
    return L
def publish(s1, s_wave, s_phase, s_slotoff, srdp, t, name):
    return [f"s_cmp_lg_u32 s{s_wave}, 0", f"s_cbranch_scc1 L_{name}_nopub",
            f"v_and_b32 v{s1+1}, 0x7fffffff, v{s1+1}", f"v_or_b32 v{s1+1}, s{s_phase}, v{s1+1}", f"v_mov_b32 v{t}, s{s_slotoff}",
            "s_mov_b64 exec, 1", f"buffer_store_dwordx2 {pr(s1)}, v{t}, s[{srdp}:{srdp+3}], 0 offen sc0 sc1", "s_mov_b64 exec, -1",
            f"L_{name}_nopub:"]
def poll_stats(vaddr, srdp, s_expect, d, name):
    L = [f"s_mov_b32 s69, {SPIN}", f"L_{name}_poll:", f"buffer_load_dwordx2 {pr(d)}, v{vaddr}, s[{srdp}:{srdp+3}], 0 offen sc0 sc1",
         "s_sub_u32 s69, s69, 1", f"s_cbranch_scc1 L_{name}_polled", "s_waitcnt vmcnt(0)",
         f"v_cmp_gt_i32 vcc, 0, v{d+1}", "s_nop 1", f"s_cmp_lg_u32 vcc_lo, s{s_expect}", f"s_cbranch_scc1 L_{name}_poll", f"L_{name}_polled:",
         f"v_and_b32 v{d+1}, 0x7fffffff, v{d+1}"]
    for sh in (1, 2, 4, 8):
        for r in (d, d + 1): L.append(f"v_add_f32_dpp v{r}, v{r}, v{r} row_shr:{sh} {DPP}")
    for r in (d, d + 1): L.append(f"v_add_f32_dpp v{r}, v{r}, v{r} row_bcast:15 row_mask:0xa bank_mask:0xf")
    L += [f"v_mul_f32 v{d}, {hex(f2u(1.0/NEL))}, v{d}", f"v_mul_f32 v{d+1}, {hex(f2u(1.0/NEL))}, v{d+1}",
          f"v_fma_f32 v{d+1}, -v{d}, v{d}, v{d+1}", f"v_max_f32 v{d+1}, 0, v{d+1}", f"v_add_f32 v{d+1}, {hex(f2u(1e-5))}, v{d+1}",
          f"v_rsq_f32 v{d+1}, v{d+1}", f"v_readlane_b32 s62, v{d}, 31", f"v_readlane_b32 s63, v{d+1}, 31"]
    return L
def act_coefs(gam, bet, c2):
    L = []
    for e in range(8): L.append(f"v_mul_f32 v{gam+e}, s63, v{gam+e}")
    for e in range(8): L.append(f"v_fma_f32 v{bet+e}, -s62, v{gam+e}, v{bet+e}")
    for e in range(8): L.append(f"v_mul_f32 v{c2+e}, {hex(NLOG2E)}, v{gam+e}")
    for e in range(8): L.append(f"v_mul_f32 v{c2+8+e}, {hex(NLOG2E)}, v{bet+e}")
    return L
def act_block(val, gam, bet, c2, s_inv, t, out):
    L = []
    for p in range(0, 8, 2): L.append(f"v_pk_fma_f32 {pr(t+p)}, {pr(val+p)}, {pr(c2+p)}, {pr(c2+8+p)}")
    ex = [f"v_exp_f32 v{t+e}, v{t+e}" for e in range(8)]
    zz = [f"v_pk_fma_f32 {pr(val+p)}, {pr(val+p)}, {pr(gam+p)}, {pr(bet+p)}" for p in range(0, 8, 2)]
    L += ex + zz
    for p in range(0, 8, 2): L.append(f"v_pk_fma_f32 {pr(t+p)}, {pr(t+p)}, s[{s_inv}:{s_inv+1}], s[{s_inv}:{s_inv+1}]")
    for e in range(8): L.append(f"v_rcp_f32 v{t+e}, v{t+e}")
    for p in range(0, 8, 2): L.append(f"v_pk_mul_f32 {pr(val+p)}, {pr(val+p)}, {pr(t+p)}")
    for p in range(0, 8, 2): L.append(f"v_cvt_pk_f16_f32 v{out+p//2}, v{val+p}, v{val+p+1}")
    return L

def stamp(i, kern, srdp):
    if not OPT['stamp']: return []
    return [f"s_memrealtime s[{70+2*i}:{71+2*i}]"]
def stamp_out(n, kern, srdp, name):
    if not OPT['stamp']: return []
    L = ["s_waitcnt lgkmcnt(0)", "v_cmp_eq_u32 vcc, 0, v0", "s_and_saveexec_b64 s[68:69], vcc", f"s_cbranch_execz L_{name}_st",
         "s_lshl_b32 s60, s2, 6", f"s_add_u32 s60, s60, {WS_STAMP + kern * 0x10000}", "v_mov_b32 v10, s60"]
    for i in range(n): L += [f"v_mov_b32 v11, s{70+2*i}", f"buffer_store_dword v11, v10, s[{srdp}:{srdp+3}], 0 offen offset:{4*i}"]
    L += [f"L_{name}_st:"]
    return L

def prep():
    L = ["s_cmp_ge_u32 s2, 520", "s_cbranch_scc1 L_prep_end"]
    L += stamp(0, 0, 16)
    L += ["s_load_dwordx16 s[24:39], s[0:1], 0",
          "s_load_dwordx8 s[40:47], s[0:1], 64",
          "v_lshrrev_b32 v1, 6, v0", "v_readfirstlane_b32 s3, v1", "v_and_b32 v1, 63, v0", "v_lshlrev_b32 v2, 4, v1",
          "s_waitcnt lgkmcnt(0)"]
    L += srd(16, 46, 0x40000)
    L += ["s_cmp_ge_u32 s2, 512", "s_cbranch_scc1 L_prep_emb", "s_cmp_ge_u32 s2, 256", "s_cbranch_scc1 L_prep_w"]
    X = 16; F = 48; GA = 112; BE = 120; S1 = 4; S2 = 8
    L += srd(4, 24, 0x800000) + srd(8, 46, 0x800000, add=WS_A1) + srd(12, 44, 256) + srd(20, 28, 1024) + srd(48, 30, 1024)
    L += ["s_and_b32 s52, s2, 7", "s_lshr_b32 s53, s2, 3",
          "s_lshl_b32 s54, s52, 2", "s_and_b32 s55, s53, 3", "s_add_u32 s54, s54, s55",
          "s_lshr_b32 s55, s53, 2", "s_lshl_b32 s55, s55, 3", "s_lshl_b32 s56, s3, 1", "s_add_u32 s55, s55, s56",
          "s_lshl_b32 s56, s54, 18", "s_lshl_b32 s57, s55, 7", "s_add_u32 s57, s57, s56",
          "v_lshrrev_b32 v3, 4, v1", "v_lshlrev_b32 v12, 16, v3", "v_and_b32 v13, 15, v1", "v_lshl_add_u32 v12, v13, 3, v12",
          "v_add_u32 v12, s57, v12",
          "s_lshl_b32 s58, s52, 8", f"s_add_u32 s58, s58, {WS_SLOT1}",
          "v_and_b32 v13, 31, v1", "v_lshl_add_u32 v13, v13, 3, s58"]
    L += ["s_or_b32 s59, s53, s3", "s_cmp_lg_u32 s59, 0", "s_cbranch_scc1 L_px_nolead",
          f"buffer_load_dwordx2 v[14:15], v13, s[16:19], 0 offen sc0 sc1", "L_px_nolead:"]
    for e in range(8):
        if e: L.append(f"s_mov_b32 s60, {e * 8192}")
        for y in range(2):
            r = X + (e * 2 + y) * 2
            L.append(f"buffer_load_dwordx2 {pr(r)}, v12, s[4:7], {'s60' if e else '0'} offen offset:{y*128}")
    L += ["s_and_b32 s60, s54, 15", "s_lshl_b32 s60, s60, 6", "v_lshl_add_u32 v3, v3, 4, s60",
          f"buffer_load_dwordx4 v[{GA}:{GA+3}], v2, s[20:23], 0 offen", f"buffer_load_dwordx4 v[{GA+4}:{GA+7}], v2, s[48:51], 0 offen",
          f"buffer_load_dwordx4 v[{BE}:{BE+3}], v3, s[20:23], 0 offen", f"buffer_load_dwordx4 v[{BE+4}:{BE+7}], v3, s[48:51], 0 offen"]
    L += ["s_lshl_b32 s61, s52, 3", "v_mov_b32 v3, s61",
          "s_cmp_lg_u32 s59, 0", "s_cbranch_scc1 L_px_nolead2",
          "s_waitcnt vmcnt(20)", "v_cmp_gt_i32 vcc, 0, v15", "s_nop 1", "v_mov_b32 v14, vcc_lo", "v_mov_b32 v15, 1",
          "s_mov_b64 exec, 1", "buffer_store_dwordx2 v[14:15], v3, s[12:15], 0 offen sc0 sc1", "s_mov_b64 exec, -1",
          "s_waitcnt vmcnt(0)", "L_px_nolead2:"]
    for i in range(8): L.append(f"v_mov_b32 v{S1+i}, 0")
    Fr = lambda y, cm, e: F + (y * 4 + cm) * 8 + e
    for ep in range(4):
        L.append(f"s_waitcnt vmcnt({4 + 12 - 4 * ep})")
        for e in (2 * ep, 2 * ep + 1):
            for y in range(2):
                r = X + (e * 2 + y) * 2
                L += unpack(Fr(y, 0, e), Fr(y, 1, e), r) + unpack(Fr(y, 2, e), Fr(y, 3, e), r + 1)
        L += stats_accum([Fr(y, cm, 2 * ep) for y in range(2) for cm in range(4)], S1, S2)
    L += stamp(1, 0, 16)
    L += ["buffer_load_dwordx2 v[14:15], v3, s[12:15], 0 offen sc0 sc1"]
    L += stats_finish(S1, S2, 3, 0, X)
    L += [f"s_mov_b32 s69, {SPIN}", "L_px_mask:", "s_waitcnt vmcnt(0)", "v_readfirstlane_b32 s64, v14", "v_readfirstlane_b32 s65, v15", "s_cmp_eq_u32 s65, 1",
          "s_cbranch_scc1 L_px_gotmask", "buffer_load_dwordx2 v[14:15], v3, s[12:15], 0 offen sc0 sc1",
          "s_sub_u32 s69, s69, 1", "s_cbranch_scc0 L_px_mask", "L_px_gotmask:",
          "s_not_b32 s64, s64", "s_lshr_b32 s65, s64, s53", "s_lshl_b32 s65, s65, 31", "s_lshl_b32 s66, s53, 3", "s_add_u32 s66, s66, s58"]
    L += publish(S1, 3, 65, 66, 16, X, "px")
    L += stamp(2, 0, 16)
    L += act_scale(GA, GA + 4, X, 66) + exp2bits(66, 66, -13) + ["s_mov_b32 s67, s66"]
    for i in range(4): L += unpack(GA + 2 * i, GA + 2 * i + 1, BE + i)
    for i in range(4): L += [f"v_mov_b32 v{X+i}, v{BE+4+i}"]
    for i in range(4): L += unpack(BE + 2 * i, BE + 2 * i + 1, X + i)
    L += ["s_lshl_b32 s57, s55, 12", "s_add_u32 s57, s57, s56", "v_add_u32 v12, s57, v2", "s_mov_b32 s60, 4096"]
    L += poll_stats(13, 16, 64, 14, "px")
    L += stamp(3, 0, 16)
    C2 = X; T = X + 16; O = X + 24
    L += act_coefs(GA, BE, C2)
    for y in range(2):
        for cm in range(4):
            o = O + 4 * (cm % 2)
            L += act_block(Fr(y, cm, 0), GA, BE, C2, 66, T, o)
            L.append(f"buffer_store_dwordx4 v[{o}:{o+3}], v12, s[8:11], {'s60' if y else '0'} offen offset:{cm*1024}")
    L += stamp(4, 0, 16) + stamp_out(5, 0, 16, "px")
    L += ["s_endpgm"]
    L += ["L_prep_w:", "s_sub_u32 s52, s2, 256", "s_lshr_b32 s53, s52, 7",
          "s_and_b32 s54, s52, 3", "s_lshl_b32 s54, s54, 1", "s_bfe_u32 s55, s52, 0x10002", "s_add_u32 s54, s54, s55",
          "s_bfe_u32 s55, s52, 0x40003",
          "s_lshl_b32 s56, s54, 4", "s_add_u32 s56, s56, s55",
          "s_cmp_eq_u32 s53, 0", "s_cselect_b32 s4, s32, s40", "s_cselect_b32 s5, s33, s41",
          f"s_cselect_b32 s57, 0, {WS_U2 - WS_U1}",
          f"s_mov_b32 s6, {512*9216}", "s_mov_b32 s7, 0x20000",
          f"s_mul_i32 s58, s54, {768*1024}", "s_add_u32 s57, s57, s58"]
    L += srd(8, 46, 768 * 1024, add=WS_U1, sadd=57)
    L += ["s_lshl_b32 s58, s56, 2", "s_add_u32 s58, s58, s3", "s_mul_i32 s58, s58, 9216", "s_mul_i32 s59, s3, 9280"]
    for t in range(9):
        if t % 4 == 0:
            L += [f"s_add_u32 m0, s59, {t*1024}"] + ([f"s_add_u32 s58, s58, 4096"] if t else ["s_nop 0"])
        L.append(f"buffer_load_dwordx4 v2, s[4:7], s58 offen offset:{(t%4)*1024} lds")
    RAW = 8; GG = 48; OUT = 120
    L += ["v_and_b32 v3, 3, v0", "v_mul_u32_u24 v3, 9280, v3", "v_lshrrev_b32 v4, 2, v0", "v_mul_u32_u24 v5, 144, v4", "v_add_u32 v3, v3, v5",
          "v_lshrrev_b32 v5, 2, v4", "v_mul_u32_u24 v5, 49152, v5", "v_and_b32 v4, 3, v4", "v_lshl_add_u32 v5, v4, 8, v5",
          "v_and_b32 v4, 3, v0", "v_lshl_add_u32 v5, v4, 4, v5", "s_bfe_u32 s60, s55, 0x20001", "s_lshl_b32 s60, s60, 6", "v_add_u32 v5, s60, v5",
          "s_and_b32 s60, s55, 1", "s_mul_i32 s60, s60, 12288", "s_lshr_b32 s61, s55, 3", "s_mul_i32 s62, s61, 24576", "s_add_u32 s62, s62, s60",
          "s_add_u32 s63, s62, 3072", "s_xor_b32 s61, s61, 1", "s_mul_i32 s64, s61, 24576", "s_add_u32 s64, s64, s60",
          "s_add_u32 s65, s64, 9216", "s_add_u32 s64, s64, 6144",
          "s_waitcnt vmcnt(0)", "s_barrier"]
    for t in range(9): L.append(f"ds_read_b128 v[{RAW+4*t}:{RAW+4*t+3}], v3 offset:{16*t}")
    g = lambda tap, e: GG + tap * 8 + e
    L.append("v_mov_b32 v6, 0")
    for t in range(9):
        L.append(f"s_waitcnt lgkmcnt({8-t})")
        for d in range(4 * t, 4 * t + 4):
            lo, hi = 2 * d, 2 * d + 1
            L += unpack(g(lo % 9, lo // 9), g(hi % 9, hi // 9), RAW + d)
            L.append(f"v_max3_f32 v6, abs(v{g(lo % 9, lo // 9)}), abs(v{g(hi % 9, hi // 9)}), v6")
    L += wave_reduce("v_max_u32", [6])
    L += ["s_lshl_b32 s60, s3, 2", "s_add_u32 s60, s60, 37120", "v_mov_b32 v7, s60", "s_lshl_b64 exec, 1, 63",
          "ds_write_b32 v7, v6", "s_mov_b64 exec, -1", "v_mov_b32 v7, 37120"]
    PP = RAW; TT = RAW + 24
    for tw in range(3):
        for p in range(0, 8, 2): L.append(f"v_pk_add_f32 {pr(TT+p)}, {pr(g(tw,p))}, {pr(g(6+tw,p))}")
        for p in range(0, 8, 2): L.append(f"v_pk_add_f32 {pr(PP+8*tw+p)}, {pr(TT+p)}, {pr(g(3+tw,p))}")
        for p in range(0, 8, 2): L.append(f"v_pk_add_f32 {pr(g(3+tw,p))}, {pr(TT+p)}, {pr(g(3+tw,p))} neg_lo:[0,1] neg_hi:[0,1]")
    rows = [g(0, 0), PP, g(3, 0), g(6, 0)]
    L += ["s_waitcnt lgkmcnt(0)", "s_barrier", f"ds_read_b128 v[{OUT}:{OUT+3}], v7"]
    for R0 in rows:
        for p in range(0, 8, 2): L.append(f"v_pk_add_f32 {pr(TT+p)}, {pr(R0+8+p)}, {pr(R0+16+p)}")
        for p in range(0, 8, 2): L.append(f"v_pk_add_f32 {pr(R0+8+p)}, {pr(R0+p)}, {pr(TT+p)}")
        for p in range(0, 8, 2): L.append(f"v_pk_add_f32 {pr(R0+p)}, {pr(R0+p)}, {pr(TT+p)} neg_lo:[0,1] neg_hi:[0,1]")
    L += ["s_waitcnt lgkmcnt(0)", f"v_max3_f32 v6, v{OUT}, v{OUT+1}, v{OUT+2}", f"v_max_f32 v6, v6, v{OUT+3}",
          "v_frexp_exp_i32_f32 v6, v6", "v_readfirstlane_b32 s66, v6", "s_max_i32 s66, s66, -100", "s_min_i32 s66, s66, 128"]
    L += exp2bits(48, 66, 13, neg=True) + ["s_mov_b32 s49, s48", "s_sub_u32 s50, s48, 0x800000", "s_mov_b32 s51, s50",
                                           "s_sub_u32 s20, s48, 0x1000000", "s_mov_b32 s21, s20"]
    L += exp2bits(67, 66, -13)
    n = 0
    for i, R0 in enumerate(rows):
        for jj, src in enumerate((R0 + 16, R0 + 8, R0)):
            sc = (48, 50, 20)[(i in (1, 2)) + (jj > 0)]
            o = OUT + 4 * (n % 2); n += 1
            for p in range(0, 8, 2): L.append(f"v_pk_mul_f32 {pr(src+p)}, {pr(src+p)}, s[{sc}:{sc+1}]")
            for p in range(0, 8, 2): L.append(f"v_cvt_pk_f16_f32 v{o+p//2}, v{src+p}, v{src+p+1}")
            L.append(f"buffer_store_dwordx4 v[{o}:{o+3}], v5, s[8:11], s{62+i} offen offset:{jj*1024}")
    L += ["s_cmp_lg_u32 s3, 0", "s_cbranch_scc1 L_pw_done", "s_lshl_b32 s60, s53, 11", "s_lshl_b32 s61, s56, 4", "s_add_u32 s60, s60, s61",
          "v_lshlrev_b32 v3, 2, v1", "v_mov_b32 v4, s67", "s_mov_b64 exec, 15",
          f"buffer_store_dword v4, v3, s[16:19], s60 offen offset:{WS_ESC}", "s_mov_b64 exec, -1", "L_pw_done:"]
    L += stamp(1, 0, 16) + stamp_out(2, 0, 16, "pw")
    L += ["s_endpgm"]
    W = 16; SV = 64; AC = 96; TP = 112
    L += ["L_prep_emb:", "s_sub_u32 s52, s2, 512"]
    L += srd(4, 34, 384 * 1024) + srd(8, 26, 1536)
    L += ["v_lshrrev_b32 v3, 3, v0", "v_mul_u32_u24 v4, 12288, v3", "v_and_b32 v5, 7, v0", "v_lshl_add_u32 v4, v5, 4, v4",
          "s_lshl_b32 s60, s52, 7", "v_lshlrev_b32 v6, 1, v0"]
    for i in range(3): L.append(f"buffer_load_ushort v{8+i}, v6, s[8:11], 0 offen offset:{512*i}")
    for e in range(12):
        if e % 4 == 0 and e: L.append("s_add_u32 s60, s60, 4096")
        L.append(f"buffer_load_dwordx4 v[{W+4*e}:{W+4*e+3}], v4, s[4:7], s60 offen offset:{(e%4)*1024}")
    L += ["v_lshlrev_b32 v6, 2, v0", "s_waitcnt vmcnt(12)"]
    for i in range(3): L.append(f"v_lshlrev_b32 v{8+i}, 16, v{8+i}")
    for i in range(3): L.append(f"v_mul_f32 v{12+i}, {hex(NLOG2E)}, v{8+i}")
    for i in range(3): L.append(f"v_exp_f32 v{12+i}, v{12+i}")
    for i in range(3): L.append(f"v_add_f32 v{12+i}, 1.0, v{12+i}")
    for i in range(3): L.append(f"v_rcp_f32 v{12+i}, v{12+i}")
    for i in range(3): L.append(f"v_mul_f32 v{8+i}, v{8+i}, v{12+i}")
    for i in range(3): L.append(f"ds_write_b32 v6, v{8+i} offset:{1024*i}")
    L += ["v_mul_u32_u24 v7, 48, v3", "s_waitcnt lgkmcnt(0)", "s_barrier"]
    for b in range(2):
        for i in range(3): L.append(f"ds_read_b128 v[{SV+12*b+4*i}:{SV+12*b+4*i+3}], v7 offset:{1536*b+16*i}")
    for i in range(16): L.append(f"v_mov_b32 v{AC+i}, 0")
    L.append("s_waitcnt vmcnt(0) lgkmcnt(0)")
    for e in range(12):
        for i in range(4): L += unpack(TP + 2 * i, TP + 2 * i + 1, W + 4 * e + i)
        for b in range(2):
            s = SV + 12 * b + e; o = s % 2
            for p in range(0, 8, 2):
                L.append(f"v_pk_fma_f32 {pr(AC+8*b+p)}, {pr(TP+p)}, {pr(s-o)}, {pr(AC+8*b+p)} op_sel:[0,{o},0] op_sel_hi:[1,{o},1]")
    L += ["v_lshlrev_b32 v7, 9, v3", "v_lshl_add_u32 v7, v5, 5, v7"]
    for b in range(2):
        for i in range(2): L.append(f"ds_write_b128 v7, v[{AC+8*b+4*i}:{AC+8*b+4*i+3}] offset:{4096+256*b+16*i}")
    L += ["s_waitcnt lgkmcnt(0)", "s_barrier", "s_cmp_ge_u32 s3, 2", "s_cbranch_scc1 L_pe_sa"]
    for i in range(32): L.append(f"ds_read_b32 v{W+i}, v6 offset:{4096+512*i}")
    L.append("s_waitcnt lgkmcnt(0)")
    for st in (16, 8, 4, 2):
        for p in range(0, st, 2): L.append(f"v_pk_add_f32 {pr(W+p)}, {pr(W+p)}, {pr(W+st+p)}")
    L += [f"v_add_f32 v{W}, v{W}, v{W+1}", "s_lshl_b32 s60, s3, 11", "s_lshl_b32 s61, s52, 8", "s_add_u32 s60, s60, s61",
          f"s_add_u32 s60, s60, {WS_EMB}", "v_lshlrev_b32 v3, 2, v1", f"buffer_store_dword v{W}, v3, s[16:19], s60 offen",
          "s_endpgm"]
    L += ["L_pe_sa:", "s_lshl_b32 s60, s52, 8", f"s_add_u32 s60, s60, {WS_SLOT2}", "v_lshlrev_b32 v3, 2, v1", "v_mov_b32 v4, 0",
          "buffer_store_dword v4, v3, s[16:19], s60 offen",
          "s_cmp_lg_u32 s52, 0", "s_cbranch_scc1 L_prep_end",
          "s_cmp_eq_u32 s3, 2", "s_cselect_b32 s20, s28, s36", "s_cselect_b32 s21, s29, s37", "s_cselect_b32 s48, s30, s38", "s_cselect_b32 s49, s31, s39",
          "s_mov_b32 s22, 1024", "s_mov_b32 s23, 0x20000", "s_mov_b32 s50, 1024", "s_mov_b32 s51, 0x20000",
          "buffer_load_dwordx4 v[16:19], v2, s[20:23], 0 offen", "buffer_load_dwordx4 v[20:23], v2, s[48:51], 0 offen", "s_waitcnt vmcnt(0)"]
    L += act_scale(16, 20, 24, 66) + exp2bits(66, 66, -13)
    L += ["s_lshl_b32 s60, s3, 2", f"s_add_u32 s60, s60, {WS_SA - 8}", "v_mov_b32 v4, s66", "v_mov_b32 v3, 0", "s_mov_b64 exec, 1",
          "buffer_store_dword v4, v3, s[16:19], s60 offen", "L_prep_end:", "s_endpgm"]
    return pad(L)

XBASE = 2 * STAGE
LDS_STAT = XBASE + 98304
CONV_LDS = LDS_STAT + 64
def conv_entry(mode):
    nm = f"c{mode+1}"
    return [f"s_mov_b32 s24, {mode}", f"s_mov_b32 s25, {hex(WS_U2 if mode else WS_U1)}",
            f"s_mov_b32 s26, {hex((WS_A2 if mode else WS_A1) - 4096)}"] + (["s_branch L_conv"] if mode else [])

def conv_body():
    L = ["L_conv:", "s_cmp_ge_u32 s2, 256", "s_cbranch_scc1 L_conv_end"]
    L += stamp(0, 1, 16)
    L += ["s_load_dwordx2 s[30:31], s[0:1], 88", "s_load_dwordx2 s[20:21], s[0:1], 0", "s_load_dwordx4 s[48:51], s[0:1], 48",
          "s_load_dwordx2 s[28:29], s[0:1], 72",
          "v_lshrrev_b32 v10, 6, v0", "v_readfirstlane_b32 s3, v10", "v_and_b32 v10, 63, v0", f"v_lshlrev_b32 v{V_L16}, 4, v10",
          "s_and_b32 s32, s2, 7", "s_lshr_b32 s33, s2, 3",
          "s_lshr_b32 s34, s32, 2",
          "s_and_b32 s35, s32, 3", "s_lshl_b32 s35, s35, 1", "s_and_b32 s36, s33, 1", "s_add_u32 s35, s35, s36",
          "s_lshr_b32 s36, s33, 1",
          f"s_mul_i32 s37, s35, {768*1024}", "s_add_u32 s25, s25, s37", "s_lshl_b32 s37, s34, 22", "s_add_u32 s26, s26, s37",
          "s_mul_i32 s37, s3, 3072", f"v_add_u32 v{V_U}, s37, v{V_L16}",
          f"s_mul_i32 s{S_M0B}, s3, 6144", "s_lshl_b32 s37, s36, 14", f"s_add_u32 s37, s37, s{S_M0B}",
          "s_lshl_b32 s38, s36, 2", "s_add_u32 s38, s38, s3",
          "s_cmp_eq_u32 s38, 0", "s_cselect_b32 s39, 0x80000000, s37", f"v_add_u32 v{V_A[0]}, s39, v{V_L16}",
          "s_add_u32 s37, s37, 4096", "s_cmp_eq_u32 s38, 63", "s_cselect_b32 s39, 0x80000000, s39", "s_cselect_b32 s37, 0x80000000, s37",
          f"v_add_u32 v{V_A[1]}, s39, v{V_L16}", f"v_add_u32 v{V_A[2]}, s37, v{V_L16}",
          f"s_mov_b32 s{S_UOFF}, 0", f"s_mov_b32 s{S_AOFF}, 0", f"s_mov_b32 s{S_CNT}, 7",
          "s_waitcnt lgkmcnt(0)"]
    L += srd(S_ASRD, 30, 0x400000 + 4096, sadd=26) + srd(S_USRD, 30, 768 * 1024, sadd=25)
    mid = ["s_and_b32 s37, s3, 1", "s_lshl_b32 s37, s37, 13", "s_xor_b32 s38, s37, 8192",
           "s_lshl_b32 s39, s3, 12", f"v_add_u32 v10, s39, v{V_L16}", f"v_add_u32 v{VA[0]}, s37, v10", f"v_add_u32 v{VA[1]}, s38, v10",
           "s_lshr_b32 s39, s3, 1", "s_sub_u32 s39, 2, s39", "s_lshl_b32 s39, s39, 12",
           f"v_add_u32 v10, s39, v{V_L16}", f"v_add_u32 v{VB[0]}, s37, v10", f"v_add_u32 v{VB[1]}, s38, v10",
           "s_mov_b32 s37, 0xbc00bc00", "s_cmp_eq_u32 s3, 1", f"s_cselect_b32 s{S_SGN}, 0x3c003c00, s37"]
    mid += [f"v_mov_b32 v{12+i}, 0" for i in range(4)] + ["s_nop 1"]
    mid += [f"v_mfma_f32_32x32x16_f16 a[{16*t}:{16*t+15}], v[12:15], v[12:15], 0" for t in range(16)]
    mid += srd(16, 30, 0x40000)
    pro, body = ml.build(ml.CFG, mid)
    L += pro
    L += stamp(1, 1, 16)
    L += [".p2align 6", "L_loop:"] + body + ["s_cbranch_scc0 L_loop"]
    L += stamp(2, 1, 16)
    M = 16; Z = 48; PQ = 112; XR = 224; ESC = 208; XF_A = 16
    SLOT = {0: {1: 0, 2: 1, 3: 2}, 1: {0: 0, 2: 1, 3: 2}, 2: {0: 0, 1: 1, 3: 2}, 3: {1: 0, 2: 1, 0: 2}}
    L += ["s_lshl_b32 s37, s3, 2"]
    for be in range(3):
        tab = 0
        for w in range(4):
            d = w ^ 3 ^ be; tab |= (d * 3 + SLOT[d][w]) << (4 * w)
        L += [f"s_lshr_b32 s38, {hex(tab)}, s37", "s_and_b32 s38, s38, 15", "s_lshl_b32 s38, s38, 13", f"s_add_u32 s38, s38, {XBASE}",
              f"v_add_u32 v{1+be}, s38, v{V_L16}"]
    L += ["s_mul_i32 s38, s3, 24576", f"s_add_u32 s38, s38, {XBASE}", f"v_add_u32 v4, s38, v{V_L16}",
          "s_lshr_b32 s38, s3, 1", "s_xor_b32 s38, s38, 1", "s_lshl_b32 s39, s35, 1", "s_add_u32 s45, s39, s38",
          "s_and_b32 s38, s3, 1", "s_xor_b32 s38, s38, 1", "s_lshl_b32 s38, s38, 1", "s_lshl_b32 s39, s36, 2", "s_add_u32 s38, s38, s39",
          "s_cmp_eq_u32 s3, 3", "s_cselect_b32 s39, 1, 0", "s_add_u32 s46, s38, s39", "s_xor_b32 s47, s46, 1",
          f"v_lshrrev_b32 v10, 8, v{V_L16}",
          "s_lshl_b32 s38, s45, 7", "v_lshl_add_u32 v5, v10, 5, s38",
          "s_lshl_b32 s38, s24, 11", "s_waitcnt vmcnt(0) lgkmcnt(0)",
          f"s_load_dwordx2 s[52:53], s[30:31], {WS_SA}",
          f"buffer_load_dwordx4 v[{ESC}:{ESC+3}], v5, s[16:19], s38 offen offset:{WS_ESC}",
          f"buffer_load_dwordx4 v[{ESC+4}:{ESC+7}], v5, s[16:19], s38 offen offset:{WS_ESC+16}",
          "s_cmp_lg_u32 s24, 0", "s_cbranch_scc1 L_pre2"]
    EMB = XR; GP = XR + 8
    L += srd(12, 30, 0x800000, add=WS_A2) + srd(20, 48, 1024) + ["s_mov_b32 s48, s50", "s_mov_b32 s49, s51", "s_mov_b32 s50, 1024", "s_mov_b32 s51, 0x20000"]
    L += ["s_lshl_b32 s38, s34, 11", f"s_add_u32 s38, s38, {WS_EMB}", "v_lshrrev_b32 v6, 1, v5",
          f"buffer_load_dwordx4 v[{EMB}:{EMB+3}], v5, s[16:19], s38 offen", f"buffer_load_dwordx4 v[{EMB+4}:{EMB+7}], v5, s[16:19], s38 offen offset:16",
          f"buffer_load_dwordx4 v[{GP}:{GP+3}], v6, s[20:23], 0 offen", f"buffer_load_dwordx4 v[{GP+4}:{GP+7}], v6, s[48:51], 0 offen",
          "s_lshl_b32 s38, s34, 4", "s_add_u32 s38, s38, s45", "s_lshl_b32 s38, s38, 18",
          "s_lshl_b32 s39, s46, 12", "s_add_u32 s39, s39, s38", f"v_add_u32 v7, s39, v{V_L16}",
          "s_lshl_b32 s39, s47, 12", "s_add_u32 s39, s39, s38", f"v_add_u32 v8, s39, v{V_L16}", "s_branch L_pre_done"]
    L += ["L_pre2:"] + srd(12, 28, 0x800000) + srd(20, 20, 0x800000)
    L += ["v_lshlrev_b32 v6, 11, v5", f"v_and_b32 v7, 0xf0, v{V_L16}", "v_lshrrev_b32 v7, 1, v7", "v_add_u32 v6, v6, v7",
          "s_lshl_b32 s38, s34, 22", "s_lshl_b32 s39, s46, 7", "s_add_u32 s39, s39, s38", "v_add_u32 v7, s39, v6",
          "s_lshl_b32 s39, s47, 7", "s_add_u32 s39, s39, s38", "v_add_u32 v8, s39, v6"]
    for e in range(8):
        L.append(f"s_mov_b32 s{60+e}, {e*8192}")
        for y in range(2): L.append(f"buffer_load_dwordx2 {pr(XR + (y*8+e)*2)}, v{7+y}, s[20:23], s{60+e} offen")
    L += ["L_pre_done:"]
    NEG = " neg_lo:[0,1] neg_hi:[0,1]"
    for be in range(4):
        h, tr = be // 2, be % 2
        zb = Z + 32 * (be % 2)
        for nbl in range(2):
            a0 = ACC(h, tr, nbl, 0, 0)
            m = lambda j, tp, r=0: M + (j * 2 + tp) * 4 + r
            z = lambda cm, r=0: zb + cm * 8 + nbl * 4 + r
            rd = lambda j, tp: [f"v_accvgpr_read_b32 v{m(j,tp,r)}, a{a0 + (j*2+tp)*4 + r}" for r in range(4)]
            two = lambda d, a, b, neg='': [f"v_pk_add_f32 {pr(d+r)}, {pr(a+r)}, {pr(b+r)}{neg}" for r in (0, 2)]
            L += rd(1, 0) + rd(2, 0) + rd(1, 1) + rd(2, 1) + rd(0, 0) + rd(0, 1) + rd(3, 0) + rd(3, 1)
            L += two(z(1), m(1, 0), m(2, 0)) + two(z(0), m(1, 0), m(2, 0), NEG) + two(z(3), m(1, 1), m(2, 1)) + two(z(2), m(1, 1), m(2, 1), NEG)
            L += two(z(1), z(1), m(0, 0), NEG) + two(z(0), z(0), m(3, 0), NEG) + two(z(3), z(3), m(0, 1), NEG) + two(z(2), z(2), m(3, 1), NEG)
            L += two(z(1), z(1), m(0, 1)) + two(z(2), z(2), m(3, 0))
            wr = lambda cm: [f"ds_write_b128 v{1+be}, v[{z(cm)}:{z(cm)+3}] offset:{(cm*2+nbl)*1024}"] if be < 3 else []
            L += wr(1)
            L += [f"v_add_f32_dpp v{z(0,r)}, v{m(3,1,r)}, v{z(0,r)} row_shr:1 {DPP}" for r in range(4)]
            L += wr(2) + wr(0)
            L += [f"v_add_f32_dpp v{z(3,r)}, v{m(0,0,r)}, v{z(3,r)} row_shl:1 {DPP}" for r in range(4)]
            L += wr(3)
            if be == 3 and nbl == 0:
                L += ["s_waitcnt lgkmcnt(0)", "s_barrier"]
                for cm in range(4):
                    for s in range(3):
                        for nb2 in range(2):
                            r = PQ + 32 * s + cm * 8 + nb2 * 4
                            L.append(f"ds_read_b128 v[{r}:{r+3}], v4 offset:{s*8192 + (cm*2+nb2)*1024}")
    OWN = Z + 32; Pp = PQ; Qq = PQ + 32; Tt = PQ + 64
    L += ["s_cmp_eq_u32 s3, 3", "s_cselect_b32 s54, -1.0, 1.0",
          "s_cmp_ge_u32 s3, 2", "s_cselect_b32 s55, 1.0, -1.0",
          "s_add_u32 s38, s3, 1", "s_bitcmp1_b32 s38, 1", "s_cselect_b32 s56, 0, 1.0",
          "s_cselect_b32 s57, s55, 0", "s_xor_b32 s57, s57, 0x80000000",
          "s_cmp_eq_u32 s24, 0", "s_cselect_b32 s38, s52, s53", "s_waitcnt vmcnt(0)"]
    for e in range(8): L.append(f"v_mul_f32 v{ESC+e}, s38, v{ESC+e}")
    LO = " op_sel_hi:[1,0,1]"; HI = " op_sel:[0,1,0]"
    for cm in range(4):
        L.append(f"s_waitcnt lgkmcnt({min(15, 18 - 6*cm)})")
        rs = range(cm * 8, cm * 8 + 8, 2)
        L += [f"v_pk_fma_f32 {pr(Tt+r)}, {pr(Qq+r)}, s[54:55], {pr(Tt+r)}{HI}" for r in rs]
        L += [f"v_pk_fma_f32 {pr(Tt+r)}, {pr(Pp+r)}, s[56:57], {pr(Tt+r)}{LO}" for r in rs]
        L += [f"v_pk_fma_f32 {pr(Tt+r)}, {pr(OWN+r)}, s[56:57], {pr(Tt+r)}{HI}" for r in rs]
        L += [f"v_pk_add_f32 {pr(OWN+r)}, {pr(OWN+r)}, {pr(Pp+r)}" for r in rs]
        L += [f"v_pk_fma_f32 {pr(OWN+r)}, {pr(Qq+r)}, s[54:55], {pr(OWN+r)}{LO}" for r in rs]
    L += stamp(3, 1, 16)
    Y = (OWN, Tt)
    L += ["s_cmp_lg_u32 s24, 0", "s_cbranch_scc1 L_tail2"]
    S1 = 16; S2 = 20; GA = 32; BE = 40; C2 = 48; T = 64; O = 72
    for i in range(8): L.append(f"v_mov_b32 v{S1+i}, 0")
    for y in range(2):
        for cm in range(4):
            ps = [Y[y] + cm * 8 + p for p in range(0, 8, 2)]
            L += [f"v_pk_fma_f32 {pr(r)}, {pr(r)}, {pr(ESC + r % 8)}, {pr(EMB + r % 8)}" for r in ps]
            L += stats_accum(ps, S1, S2)
    L += stats_finish(S1, S2, 3, LDS_STAT, 112)
    L += ["s_lshl_b32 s58, s32, 8", f"s_add_u32 s58, s58, {WS_SLOT2}", "s_lshl_b32 s66, s33, 3", "s_add_u32 s66, s66, s58",
          "s_mov_b32 s65, 0x80000000", "s_mov_b32 s64, -1"]
    L += publish(S1, 3, 65, 66, 16, 112, "c1")
    L += stamp(4, 1, 16)
    L += [f"v_and_b32 v13, 0x1f0, v{V_L16}", "v_lshrrev_b32 v13, 1, v13", "v_add_u32 v13, s58, v13", "s_mov_b32 s52, s53"]
    for i in range(4): L += unpack(GA + 2 * i, GA + 2 * i + 1, GP + i) + unpack(BE + 2 * i, BE + 2 * i + 1, GP + 4 + i)
    L += poll_stats(13, 16, 64, 14, "c1")
    L += stamp(5, 1, 16)
    L += act_coefs(GA, BE, C2)
    for y in range(2):
        for cm in range(4):
            o = O + 4 * (cm % 2)
            L += act_block(Y[y] + cm * 8, GA, BE, C2, 52, T, o)
            L.append(f"buffer_store_dwordx4 v[{o}:{o+3}], v{7+y}, s[12:15], 0 offen offset:{cm*1024}")
    L += stamp(6, 1, 16) + stamp_out(7, 1, 16, "c1")
    L += ["s_endpgm"]
    L += ["L_tail2:"]
    XF = 16; O = 112; n = 0
    for y in range(2):
        for ep in range(0, 8, 2):
            xf = lambda cm, e: XF + (n % 2) * 8 + cm * 2 + (e - ep)
            for e in (ep, ep + 1):
                r = XR + (y * 8 + e) * 2
                L += unpack(xf(0, e), xf(1, e), r) + unpack(xf(2, e), xf(3, e), r + 1)
            for cm in range(4): L.append(f"v_pk_fma_f32 {pr(xf(cm,ep))}, {pr(Y[y]+cm*8+ep)}, {pr(ESC+ep)}, {pr(xf(cm,ep))}")
            for e in (ep, ep + 1):
                o = O + 4 * n + 2 * (e - ep)
                L += [f"v_cvt_pk_bf16_f32 v{o}, v{xf(0,e)}, v{xf(1,e)}", f"v_cvt_pk_bf16_f32 v{o+1}, v{xf(2,e)}, v{xf(3,e)}",
                      f"buffer_store_dwordx2 {pr(o)}, v{7+y}, s[12:15], s{60+e} offen"]
            n += 1
    L += stamp(4, 2, 16) + stamp_out(5, 2, 16, "c2")
    L += ["L_conv_end:", "s_endpgm"]
    return pad(L)

def desc(name, vgpr, accum, sgpr=96):
    return f""".amdhsa_kernel {name}
  .amdhsa_next_free_vgpr {vgpr}
  .amdhsa_next_free_sgpr {sgpr}
  .amdhsa_accum_offset {accum}
  .amdhsa_group_segment_fixed_size 0
  .amdhsa_kernarg_size 96
  .amdhsa_user_sgpr_count 2
  .amdhsa_user_sgpr_kernarg_segment_ptr 1
  .amdhsa_system_sgpr_workgroup_id_x 1
  .amdhsa_float_denorm_mode_32 3
.end_amdhsa_kernel
"""
def head(name): return f".globl {name}\n.p2align 8\n.type {name},@function\n{name}:\n"

out = f"""; ADM res-block: GN+SiLU -> conv3x3 (+emb) -> GN+SiLU -> conv3x3 -> +x.   Generated by gen/gen.py (own generator).
; @launch kernel=prep_kernel grid=(520,1,1) block=(256,1,1) lds=37184
; @launch kernel=conv1_kernel grid=(256,1,1) block=(256,1,1) lds={CONV_LDS}
; @launch kernel=conv2_kernel grid=(256,1,1) block=(256,1,1) lds={CONV_LDS}
.amdgcn_target "amdgcn-amd-amdhsa--gfx950"
.text
"""
out += head("prep_kernel") + fmt(prep())
out += head("conv2_kernel") + fmt(conv_entry(1))
out += head("conv1_kernel") + fmt(conv_entry(0)) + fmt(conv_body())
out += '.section .rodata,"a"\n.p2align 6\n' + desc("prep_kernel", 128, 128) + ".p2align 6\n" + desc("conv1_kernel", 512, 256) + ".p2align 6\n" + desc("conv2_kernel", 512, 256)
sys.stdout.write(out)
```
